```python
import torch

def _softmax(x, axis=-1):
    return torch.softmax(x, dim=axis)
def _gelu(x):
    return torch.nn.functional.gelu(x, approximate="tanh")
def _silu(x):
    return torch.nn.functional.silu(x)
def _sigmoid(x):
    return torch.sigmoid(x)
def _layernorm(x, axis=-1, eps=1e-5):
    m = x.mean(dim=axis, keepdim=True)
    v = x.var(dim=axis, keepdim=True, unbiased=False)
    return (x - m) / torch.sqrt(v + eps)
def _scatter_add(tgt, idx, src, axis=0):
    return tgt.clone().index_add_(axis, idx, src)
def _segment_sum(src, seg, n):
    out = torch.zeros((n,) + src.shape[1:], dtype=src.dtype)
    return out.index_add_(0, seg, src)
def _pad(x, pw):
    flat = tuple(v for pair in reversed(pw) for v in pair)
    return torch.nn.functional.pad(x, flat)

kernel_name = 'concat_heads__mha_block_cached__gqa_block_cached__near_ridge'

def setup_inputs():

    _w = (lambda a: (lambda t: t.to(torch.bfloat16) if t.is_floating_point() else t)(torch.as_tensor(a)))
    def _A_setup():
        B, Sq, D = 8, 208, 512
        H, Sk, Dh = 32, 512, 128
        return {
            "x": _w((lambda *s: torch.randn(*s, dtype=torch.bfloat16) * 0.8)(B, Sq, D)),
            "k_cache": _w((lambda *s: torch.randn(*s, dtype=torch.bfloat16) * 0.8)(B, H, Sk, Dh)),
            "v_cache": _w((lambda *s: torch.randn(*s, dtype=torch.bfloat16) * 0.05)(B, H, Sk, Dh)),
            "wq": _w((lambda *s: torch.randn(*s, dtype=torch.bfloat16) * 0.8)(D, H * Dh) * (D ** -0.5)),
            "wo": _w((lambda *s: torch.randn(*s, dtype=torch.bfloat16) * 0.05)(H * Dh, D) * ((H * Dh) ** -0.5)),
        }
    _A_in = _A_setup()

    def _B_setup():
        B, Sq, D = 8, 208, 512
        Hq, Hkv, Sk, Dh = 32, 32, 512, 128
        assert Hq % Hkv == 0, (Hq, Hkv)
        return {
            "x": _w((lambda *s: torch.randn(*s, dtype=torch.bfloat16) * 0.8)(B, Sq, D)),
            "k_cache": _w((lambda *s: torch.randn(*s, dtype=torch.bfloat16) * 0.8)(B, Hkv, Sk, Dh)),
            "v_cache": _w((lambda *s: torch.randn(*s, dtype=torch.bfloat16) * 0.05)(B, Hkv, Sk, Dh)),
            "wq": _w((lambda *s: torch.randn(*s, dtype=torch.bfloat16) * 0.8)(D, Hq * Dh) * (D ** -0.5)),
            "wo": _w((lambda *s: torch.randn(*s, dtype=torch.bfloat16) * 0.05)(Hq * Dh, D) * ((Hq * Dh) ** -0.5)),
        }
    _B_in = _B_setup()

    return {
        "A_x": _A_in["x"],
        "A_k_cache": _A_in["k_cache"],
        "A_v_cache": _A_in["v_cache"],
        "A_wq": _A_in["wq"],
        "A_wo": _A_in["wo"],
        "B_x": _B_in["x"],
        "B_k_cache": _B_in["k_cache"],
        "B_v_cache": _B_in["v_cache"],
        "B_wq": _B_in["wq"],
        "B_wo": _B_in["wo"],
    }

def reference(A_x, A_k_cache, A_v_cache, A_wq, A_wo, B_x, B_k_cache, B_v_cache, B_wq, B_wo):
    def _A_ref(x, k_cache, v_cache, wq, wo):
        B, Sq, D = x.shape
        H, Dh = 32, 128
        q = (lambda x, *d: x.permute(*d))((x @ wq).reshape(B, Sq, H, Dh), 0, 2, 1, 3)
        scores = torch.einsum("bhqd,bhkd->bhqk", q, k_cache) * (Dh ** -0.5)
        p = _softmax(scores, axis=-1)
        o = torch.einsum("bhqk,bhkd->bhqd", p, v_cache)
        return (lambda x, *d: x.permute(*d))(o, 0, 2, 1, 3).reshape(B, Sq, H * Dh) @ wo

    def _B_ref(x, k_cache, v_cache, wq, wo):
        B, Sq, D = x.shape
        Hq, Dh = 32, 128
        Hkv = k_cache.shape[1]
        rep = Hq // Hkv
        q = (lambda x, *d: x.permute(*d))((x @ wq).reshape(B, Sq, Hq, Dh), 0, 2, 1, 3)
        k = (lambda x, n, axis: torch.repeat_interleave(x, n, dim=axis))(k_cache, rep, axis=1)
        v = (lambda x, n, axis: torch.repeat_interleave(x, n, dim=axis))(v_cache, rep, axis=1)
        scores = torch.einsum("bhqd,bhkd->bhqk", q, k) * (Dh ** -0.5)
        p = _softmax(scores, axis=-1)
        o = torch.einsum("bhqk,bhkd->bhqd", p, v)
        return (lambda x, *d: x.permute(*d))(o, 0, 2, 1, 3).reshape(B, Sq, Hq * Dh) @ wo

    a = _A_ref(A_x, A_k_cache, A_v_cache, A_wq, A_wo)
    b = _B_ref(B_x, B_k_cache, B_v_cache, B_wq, B_wo)
    return torch.concatenate([a, b], axis=-1)
```

```python
import re

_REG = re.compile(r"^(v|a|s)(\d+)$|^(v|a|s)\[(\d+):(\d+)\]$")
TRANS = ("v_exp_f32", "v_log_f32", "v_rcp_f32", "v_rsq_f32", "v_sqrt_f32", "v_sin_f32", "v_cos_f32")


def regs_of(tok):
    tok = tok.strip()
    if tok.startswith("-"):
        tok = tok[1:]
    if tok.startswith("abs(") and tok.endswith(")"):
        tok = tok[4:-1]
    if tok.startswith("|") and tok.endswith("|"):
        tok = tok[1:-1]
    if tok in ("vcc", "exec"):
        return {(tok, 0), (tok, 1)}
    if tok in ("vcc_lo", "exec_lo"):
        return {(tok[:-3], 0)}
    if tok in ("vcc_hi", "exec_hi"):
        return {(tok[:-3], 1)}
    if tok == "m0":
        return {("m0", 0)}
    m = _REG.match(tok)
    if not m:
        return set()
    if m.group(1):
        return {(m.group(1), int(m.group(2)))}
    return {(m.group(3), i) for i in range(int(m.group(4)), int(m.group(5)) + 1)}


def R(kind, base, n=1):
    return f"{kind}{base}" if n == 1 else f"{kind}[{base}:{base + n - 1}]"


def v(b, n=1): return R("v", b, n)
def a(b, n=1): return R("a", b, n)
def s(b, n=1): return R("s", b, n)


class Ins:
    __slots__ = ("op", "kind", "w", "r", "srcA", "srcB", "srcC", "states", "text", "wide_store", "lds_dma")

    def __init__(self):
        self.w = set(); self.r = set(); self.srcA = set(); self.srcB = set(); self.srcC = set()
        self.states = 1; self.wide_store = set(); self.lds_dma = False


def parse(text):
    t = text.split(";")[0].strip()
    parts = t.split(None, 1)
    op = parts[0]
    rest = parts[1] if len(parts) > 1 else ""
    ops = [o.strip() for o in rest.split(",")] if rest else []
    mods = []
    if ops:
        last = ops[-1].split()
        if last:
            ops[-1] = last[0]
            mods = last[1:]
    I = Ins(); I.op = op; I.text = text
    rg = [regs_of(o) for o in ops]
    if op.startswith("v_mfma"):
        I.kind = "mfma"
        I.w = set(rg[0]); I.srcA = rg[1]; I.srcB = rg[2]; I.srcC = rg[3]
        I.r = rg[1] | rg[2] | rg[3]
    elif op.startswith("v_permlane"):
        I.kind = "perm"
        I.w = rg[0] | rg[1]; I.r = rg[0] | rg[1]
    elif op.startswith("v_"):
        I.kind = "trans" if op.split("_e")[0] in TRANS or op in TRANS else "valu"
        I.w = set(rg[0])
        I.r = set().union(*rg[1:]) if len(rg) > 1 else set()
        if op.startswith("v_fmac") or op.startswith("v_dot2c") or op.startswith("v_writelane"):
            I.r |= rg[0]
        if op.startswith("v_cndmask") and len(rg) == 3:
            I.r |= regs_of("vcc")
        if any(m.startswith("row_") or m.startswith("quad_perm") for m in mods):
            I.kind = "dpp"
        if op.startswith("v_cmpx"):
            I.w |= regs_of("exec")
    elif op.startswith("ds_read") or op.startswith("ds_bpermute") or op.startswith("ds_swizzle"):
        I.kind = "dsr"
        I.w = set(rg[0]); I.r = set().union(*rg[1:])
    elif op.startswith("ds_"):
        I.kind = "dsw"
        I.r = set().union(*rg)
        if "rtn" in op:
            I.kind = "dsr"; I.w = set(rg[0]); I.r = set().union(*rg[1:])
    elif op.startswith("buffer_load") or op.startswith("global_load"):
        I.kind = "vmem"
        if "lds" in mods or "_lds_" in op:
            I.lds_dma = True
            I.r = set().union(*rg) | regs_of("m0")
        else:
            I.w = set(rg[0]); I.r = set().union(*rg[1:])
    elif op.startswith("buffer_store") or op.startswith("global_store"):
        I.kind = "vmem"
        I.r = set().union(*rg)
        if op.endswith("x4") or op.endswith("x3"):
            I.wide_store = set(rg[0]) if op.startswith("buffer") else set(rg[1])
    elif op.startswith("buffer_atomic") or op.startswith("global_atomic"):
        I.kind = "vmem"
        I.r = set().union(*rg)
        if "sc0" in mods:
            I.w = set(rg[0])
    elif op.startswith("buffer_") :
        I.kind = "vmem"
    elif op == "s_nop":
        I.kind = "nop"; I.states = int(ops[0], 0) + 1
    elif op.startswith("s_load") or op.startswith("s_memtime") or op.startswith("s_memrealtime"):
        I.kind = "smem"; I.w = set(rg[0]); I.r = set().union(*rg[1:]) if len(rg) > 1 else set()
    elif op.startswith("s_"):
        I.kind = "salu"
        nodst = ("s_cmp", "s_waitcnt", "s_barrier", "s_branch", "s_cbranch", "s_endpgm", "s_setprio", "s_sleep",
                 "s_bitcmp", "s_setpc", "s_sendmsg")
        if op.startswith(nodst):
            I.r = set().union(*rg) if rg else set()
        else:
            I.w = set(rg[0]); I.r = set().union(*rg[1:]) if len(rg) > 1 else set()
            if "saveexec" in op:
                I.w |= regs_of("exec"); I.r |= regs_of("exec")
    else:
        raise ValueError("unknown instruction: " + text)
    return I


VALU_KINDS = ("valu", "trans", "perm", "dpp")


def is_vgpr(x): return x[0] in ("v", "a")
def is_sgpr(x): return x[0] in ("s", "vcc")


def required(prod, cons):
    need = 0
    pw, cr, cw = prod.w, cons.r, cons.w
    if prod.kind == "mfma":
        D = pw
        if cons.kind == "mfma":
            if D & (cons.srcA | cons.srcB):
                need = max(need, 8)
            if D & cons.srcC:
                if cons.srcC != D:
                    need = max(need, 6)
            elif D & cw:
                need = max(need, 6)
        elif cons.kind in VALU_KINDS or cons.kind in ("vmem", "dsr", "dsw"):
            if D & (cr | cw):
                need = max(need, 8)
        if cons.kind in VALU_KINDS and (prod.srcC & cw):
            need = max(need, 3)
        if cons.kind in ("dsr", "vmem") and (prod.srcC & cw):
            need = max(need, 3)
    if prod.kind in VALU_KINDS:
        vw = {x for x in pw if is_vgpr(x)}
        sw = {x for x in pw if is_sgpr(x)}
        if cons.kind == "mfma" and (vw & cr):
            need = max(need, 2)
        if cons.kind == "mfma" and any(x[0] == "exec" for x in pw):
            need = max(need, 4)
        if cons.kind in ("perm", "dpp") and (vw & cr):
            need = max(need, 2)
        if prod.kind == "trans" and cons.kind in VALU_KINDS and cons.kind != "trans" and (vw & (cr | cw)):
            need = max(need, 1)
        if prod.kind == "trans" and cons.kind in ("vmem", "dsw", "dsr") and (vw & cr):
            need = max(need, 1)
        if (cons.op.startswith("v_readfirstlane") or cons.op.startswith("v_readlane")) and (vw & cr):
            need = max(need, 1)
        if sw & cr:
            if cons.kind == "vmem":
                need = max(need, 5)
            elif cons.kind in VALU_KINDS:
                need = max(need, 4 if cons.op.startswith(("v_readlane", "v_writelane", "v_div_fmas")) else 2)
            elif cons.kind in ("salu", "smem"):
                need = max(need, 1)
        if any(x[0] == "exec" for x in pw) and cons.kind in VALU_KINDS:
            need = max(need, 5)
    if prod.kind == "salu" and ("m0", 0) in pw and (cons.lds_dma or cons.op.startswith("s_movrel")):
        need = max(need, 1)
    if prod.wide_store and (prod.wide_store & cw):
        need = max(need, 2)
    return need


class Asm:
    def __init__(self):
        self.lines = []
        self.hist = []
        self.lgkm = []
        self.vm = []
        self.nops = 0
        self.count = {}
        self.auto_vm = True

    def raw(self, text):
        self.lines.append(text)

    def comment(self, text):
        self.lines.append("    ; " + text)

    def label(self, name):
        self.lines.append(name + ":")

    def _push(self, I):
        self.lines.append("    " + I.text)
        self.hist.append(I)
        if len(self.hist) > 24:
            self.hist.pop(0)
        self.count[I.kind] = self.count.get(I.kind, 0) + 1

    def barrier_hist(self):
        self.hist = []

    def wait_lgkm(self, n=0):
        n = min(n, 15)
        if len(self.lgkm) > n:
            self._push(parse(f"s_waitcnt lgkmcnt({n})"))
            self.lgkm = self.lgkm[len(self.lgkm) - n:] if n else []

    def wait_vm(self, n=0, force=False):
        n = min(n, 63)
        if len(self.vm) > n or force:
            self._push(parse(f"s_waitcnt vmcnt({n})"))
            self.vm = self.vm[len(self.vm) - n:] if n and len(self.vm) > n else ([] if not n else self.vm)

    def wait_tag(self, *tags):
        last = -1
        for i, (t, _) in enumerate(self.vm):
            if t in tags:
                last = i
        if last >= 0:
            self.wait_vm(len(self.vm) - 1 - last)

    def prewait(self, text, extra=0):
        I = parse(text)
        touched = I.r | I.w
        last = -1
        for i, d in enumerate(self.lgkm):
            if d & touched:
                last = i
        if last < 0:
            return False
        last = min(last + extra, len(self.lgkm) - 1)
        self.wait_lgkm(len(self.lgkm) - 1 - last)
        return True

    def __call__(self, text, tag=None):
        for line in text.split("\n"):
            line = line.strip()
            if line:
                self.emit(line, tag)

    def emit(self, text, tag=None):
        I = parse(text)
        touched = I.r | I.w
        last = -1
        for i, d in enumerate(self.lgkm):
            if d & touched:
                last = i
        if last >= 0:
            self.wait_lgkm(len(self.lgkm) - 1 - last)
        if self.auto_vm:
            last = -1
            for i, (t, d) in enumerate(self.vm):
                if d & touched:
                    last = i
            if last >= 0:
                self.wait_vm(len(self.vm) - 1 - last)
        dist = 0
        need = 0
        for p in reversed(self.hist):
            rq = required(p, I)
            if rq > dist:
                need = max(need, rq - dist)
            dist += p.states
            if dist >= 12:
                break
        if need > 0:
            self._push(parse(f"s_nop {need - 1}"))
            self.nops += need
        self._push(I)
        if I.op == "s_waitcnt":
            m = re.search(r"lgkmcnt\((\d+)\)", text)
            if m:
                n = int(m.group(1))
                if len(self.lgkm) > n:
                    self.lgkm = self.lgkm[len(self.lgkm) - n:] if n else []
            m = re.search(r"vmcnt\((\d+)\)", text)
            if m:
                n = int(m.group(1))
                if len(self.vm) > n:
                    self.vm = self.vm[len(self.vm) - n:] if n else []
        if I.kind == "dsr":
            self.lgkm.append(set(I.w))
        elif I.kind == "dsw":
            self.lgkm.append(set())
        elif I.kind == "vmem":
            self.vm.append((tag, set(I.w)))
        return I

    def state(self):
        return ([frozenset(x) for x in self.lgkm], [(t, frozenset(d)) for t, d in self.vm])

    def text(self):
        return "\n".join(self.lines) + "\n"


def interleave(A, main, fill, start=0, end=None):
    n = len(main)
    if end is None:
        end = n
    span = max(end - start, 1)
    fi = 0
    for i, m in enumerate(main):
        A(m)
        if i >= start:
            tgt = (len(fill) * (i - start + 1) + span - 1) // span if i < end else len(fill)
            tgt = min(tgt, len(fill))
            while fi < tgt:
                f = fill[fi]
                if callable(f):
                    f()
                else:
                    A(f)
                fi += 1
    while fi < len(fill):
        f = fill[fi]
        if callable(f):
            f()
        else:
            A(f)
        fi += 1
```

```python
import math
import struct
from asmlib import *

MF = "v_mfma_f32_16x16x32_bf16"

VS = [0, 8192, 16384, 24576]
MISC = 32768
KBASE = 49152
KSREL = [8192, 16384, 24576, 0]
WBASE = 24576
NWS = 4
XST = [8192, 16384, 65536, 73728]
Q13 = MISC
LMRG = MISC + 8192
LDS_BYTES = 81920

vO = 0
vSe, vSo, vP, vL = 128, 140, 152, 164
vXS = 104
vA0 = 168
vDK, vDV = 174, 175
vS13 = 176
vM = 176
vT = 180
vL16 = 184
NARCH = 188
aQ = 0
aF = 48
NFR = 5

sW_ = 3
sBLK, sB, sH, sT0 = 4, 5, 6, 7
sX, sWQ, sK, sV, sO = 28, 32, 36, 40, 44
sWOFF, sKVOFF, sCNT, sXO2, sDB = 48, 49, 50, 51, 52
sT1, sT2 = 54, 55
sXB, sXROW = 56, 57
sSCALE, sLO, sHI = 58, 59, 60
sTOFF = 61
sK0, sXOFF = 62, 63
sFL = 84

PROF = False
PROF_OFF = 128 << 20
PART_OFF = 32 << 20
FLAG_OFF = 96 << 20
sPT = 64
OPT = dict(xnt=0, wnt=0, krot=1, nocheck=0, noextra=0, prio=0, ost=2, eprio=1, qslots=8, warm=1, orot=1, nooload=0, nowo=0, noinv=0, oldsc1=0, wbl2=0, extra=1, kvearly=0, kv0=2, fuse=1)


def f32bits(x):
    return struct.unpack("<I", struct.pack("<f", x))[0]


class Sched:
    def __init__(self, A):
        self.A = A

    def do(self, it):
        if callable(it):
            it()
        elif isinstance(it, tuple):
            self.A(it[0], tag=it[1])
        else:
            self.A(it)

    def run(self, mfmas, nv, va, nxt=None, extra=0, nvmax=1, deadlines=None, events=None):
        A = self.A
        nv = [list(q) for q in nv]
        va = [list(q) for q in va]
        n = len(mfmas)
        for i, m in enumerate(mfmas):
            if events and i in events:
                for ev in events[i]:
                    self.do(ev)
            for q in nv:
                while any(len(x) > 2 and x[2] <= i for x in q):
                    assert q[0][0] < i or i == 0 or (events and i in events and q[0][0] <= i), ("read not issuable before its use", q[0], i)
                    self.do(q.pop(0)[1])
            if deadlines and i in deadlines:
                for q in va:
                    while q and q[0][0] < deadlines[i]:
                        self.do(q.pop(0)[2])
            A(m)
            used = 0
            follow = mfmas[i + 1] if i + 1 < n else nxt
            vready = any(q and q[0][0] <= i for q in va)
            lim = nvmax if vready else 3
            for q in nv:
                while q and q[0][0] <= i and (used < lim or (len(q[0]) > 2 and q[0][2] <= i + 5 and used < lim + 2)
                                              or (q[0][0] <= i - 4 and used < lim + 1)):
                    self.do(q.pop(0)[1])
                    used += 1
            if follow is not None and A.prewait(follow, extra):
                used += 1
            budget = 8
            progress = True
            while progress:
                progress = False
                for q in va:
                    if q and q[0][0] <= i and q[0][1] <= budget:
                        e, c, it = q.pop(0)
                        self.do(it)
                        budget -= c
                        progress = True
        for q in nv:
            for x in q:
                self.do(x[1])
        for q in va:
            for e, c, it in q:
                self.do(it)


def frag_plan(frags, nslots, npre=0):
    free = [-1] * nslots
    slots = []
    q = []
    for f, fr in enumerate(frags):
        if f < npre:
            sl = f
        else:
            sl = min(range(nslots), key=lambda x: free[x])
            assert free[sl] < min(fr["uses"]), "frag ring too small"
            for t in fr["reads"](sl):
                q.append((max(free[sl], fr.get("avail", -1)), t, min(fr["uses"])))
        free[sl] = max(fr["uses"])
        slots.append(sl)
    return slots, q


def gen_k1(A, name="attn_kernel"):
    S = Sched(A)
    nst = [0]
    XNT = " nt" if OPT["xnt"] else ""
    WNT = " nt" if OPT["wnt"] else ""

    def stamp():
        if not PROF:
            return
        i = nst[0]; nst[0] += 1
        A.wait_lgkm(0)
        A(f"s_memrealtime s[{sPT+2*i}:{sPT+2*i+1}]")
        A("s_waitcnt lgkmcnt(0)")

    def stamp_flush():
        if not PROF:
            return
        A(f"s_getreg_b32 s{sT1}, hwreg(HW_REG_HW_ID)")
        A(f"s_getreg_b32 s{sT2}, hwreg(HW_REG_XCC_ID)")
        A(f"s_add_u32 s{sX}, s24, {PROF_OFF}\ns_addc_u32 s{sX+1}, s25, 0\ns_mov_b32 s{sX+2}, 0x1000000")
        A(f"s_lshl_b32 s{sT0}, s2, 2\ns_add_u32 s{sT0}, s{sT0}, s{sW_}\ns_lshl_b32 s{sT0}, s{sT0}, 6")
        A(f"v_mov_b32 v0, 0")
        for i in range(nst[0]):
            A(f"v_mov_b32 v1, s{sPT+2*i}")
            A(f"buffer_store_dword v1, v0, s[{sX}:{sX+3}], s{sT0} offen offset:{4*i}")
        for r, off in ((96, 44), (90, 48), (91, 52), (sT1, 56), (sT2, 60)):
            A(f"v_mov_b32 v1, s{r}")
            A(f"buffer_store_dword v1, v0, s[{sX}:{sX+3}], s{sT0} offen offset:{off}")

    A.raw(f".globl {name}\n.p2align 8\n.type {name},@function\n{name}:")
    A("s_cmp_ge_u32 s2, 512")
    A(f"s_cbranch_scc1 L_{name}_end")
    A("s_load_dwordx8 s[8:15], s[0:1], 0")
    A("s_load_dwordx8 s[16:23], s[0:1], 40")
    A("s_load_dwordx2 s[24:25], s[0:1], 96")
    if PROF:
        A(f"s_memrealtime s[{sPT}:{sPT+1}]"); nst[0] = 1
    if OPT["prio"] == 3:
        A("s_cmp_lt_u32 s2, 256")
        A(f"s_cbranch_scc1 L_{name}_p3")
        A("s_setprio 2")
        A.label(f"L_{name}_p3")
    if OPT["prio"] == 4:
        A("s_setprio 2")
    A(f"s_and_b32 s{sT0}, s2, 7")
    A(f"s_lshr_b32 s{sBLK}, s{sT0}, 2")
    A(f"s_and_b32 s{sT0}, s{sT0}, 3")
    A(f"s_lshr_b32 s{sT1}, s2, 3")
    A(f"s_lshr_b32 s{sB}, s{sT1}, 3")
    A(f"s_and_b32 s{sT1}, s{sT1}, 7")
    A(f"s_lshl_b32 s{sH}, s{sT0}, 3")
    A(f"s_add_u32 s{sH}, s{sH}, s{sT1}")
    vW, vLn, t0, t1, t2 = 10, 11, 12, 13, 14
    vq, vg, vr, vc = 15, 16, 17, 18
    vX = vS13
    vDW = vS13 + 4
    A(f"v_lshrrev_b32 v{vW}, 6, v0")
    A(f"v_and_b32 v{vLn}, 63, v0")
    A(f"v_readfirstlane_b32 s{sW_}, v{vW}")
    A(f"v_lshlrev_b32 v{vL16}, 4, v{vLn}")
    A(f"v_and_b32 v{vq}, 15, v{vLn}")
    A(f"v_lshrrev_b32 v{vg}, 4, v{vLn}")
    A(f"v_bfe_u32 v{vr}, v{vLn}, 2, 2")
    A(f"v_and_b32 v{vc}, 3, v{vLn}")
    A(f"v_lshrrev_b32 v{t0}, 3, v{vLn}")
    A(f"v_and_b32 v{t1}, 7, v{vLn}")
    A(f"v_lshlrev_b32 v{vX+2}, 10, v{t0}")
    A(f"v_xor_b32 v{t2}, v{t1}, v{vg}")
    A(f"v_lshl_add_u32 v{vX}, v{t2}, 4, v{vX+2}")
    A(f"v_xor_b32 v{t2}, 4, v{t2}")
    A(f"v_lshl_add_u32 v{vX+1}, v{t2}, 4, v{vX+2}")
    A(f"v_lshl_add_u32 v{t0}, v{vW}, 3, v{t0}")
    A(f"v_and_b32 v{t2}, 1, v{vg}")
    A(f"v_and_b32 v{vDW}, 1, v{vW}")
    A(f"v_lshl_or_b32 v{t2}, v{vDW}, 1, v{t2}")
    A(f"v_lshlrev_b32 v{t2}, 1, v{t2}")
    A(f"v_xor_b32 v{t2}, v{t2}, v{t1}")
    A(f"v_lshlrev_b32 v{t2}, 4, v{t2}")
    A(f"v_lshl_add_u32 v{vDW}, v{t0}, 13, v{t2}")
    A(f"v_and_b32 v{t2}, 1, v{vW}")
    A(f"v_lshl_add_u32 v{t2}, v{t2}, 2, v{vg}")
    A(f"v_xor_b32 v{t2}, v{t2}, v{t1}")
    A(f"v_lshlrev_b32 v{t2}, 4, v{t2}")
    A(f"v_lshl_add_u32 v{vDK}, v{t0}, 8, v{t2}")
    A(f"v_lshlrev_b32 v{t2}, 1, v{vg}")
    A(f"v_xor_b32 v{t2}, v{t2}, v{t1}")
    A(f"v_lshlrev_b32 v{t2}, 4, v{t2}")
    A(f"v_lshl_add_u32 v{vDV}, v{t0}, 8, v{t2}")
    A(f"s_lshl_b32 s{sDB}, s{sW_}, 11")
    A(f"s_mov_b32 s{sXB}, {XST[0]}")
    for w_ in range(1, 4):
        A(f"s_cmp_eq_u32 s{sW_}, {w_}")
        A(f"s_cselect_b32 s{sXB}, {XST[w_]}, s{sXB}")
    A(f"s_mul_i32 s{sXROW}, s{sW_}, {48*1024}")
    A(f"s_add_u32 s{sK0}, s{sH}, s{sB}\ns_and_b32 s{sK0}, s{sK0}, 7\ns_lshl_b32 s{sK0}, s{sK0}, 1")
    if not OPT["krot"]:
        A(f"s_mov_b32 s{sK0}, 0")
    A(f"s_mul_i32 s{sX}, s{sB}, 212992")
    A(f"s_lshl_b32 s{sWQ}, s{sH}, 8")
    A(f"s_lshl_b32 s{sK}, s{sB}, 5\ns_add_u32 s{sK}, s{sK}, s{sH}\ns_lshl_b32 s{sK}, s{sK}, 17")
    A(f"s_mov_b32 s{sX+2}, 212992\ns_mov_b32 s{sX+3}, 0x20000")
    A(f"s_sub_u32 s{sWQ+2}, 0x400000, s{sWQ}\ns_mov_b32 s{sWQ+3}, 0x20000")
    A(f"s_mov_b32 s{sK+2}, 0x20000\ns_mov_b32 s{sK+3}, 0x20000\ns_mov_b32 s{sV+2}, 0x20000\ns_mov_b32 s{sV+3}, 0x20000")
    A(f"s_cmp_eq_u32 s{sBLK}, 0")
    A("s_waitcnt lgkmcnt(0)")
    A("s_cselect_b64 s[8:9], s[8:9], s[16:17]")
    A("s_cselect_b64 s[10:11], s[10:11], s[18:19]")
    A("s_cselect_b64 s[12:13], s[12:13], s[20:21]")
    A("s_cselect_b64 s[14:15], s[14:15], s[22:23]")
    A(f"s_add_u32 s{sX}, s8, s{sX}\ns_addc_u32 s{sX+1}, s9, 0")
    A(f"s_add_u32 s{sWQ}, s14, s{sWQ}\ns_addc_u32 s{sWQ+1}, s15, 0")
    A(f"s_add_u32 s{sV}, s12, s{sK}\ns_addc_u32 s{sV+1}, s13, 0")
    A(f"s_add_u32 s{sK}, s10, s{sK}\ns_addc_u32 s{sK+1}, s11, 0")

    def dma_w(k):
        sb = WBASE + (k % NWS) * 8192
        return [f"s_add_u32 m0, s{sDB}, {sb}",
                f"s_add_u32 s{sWOFF}, s{sK0}, {k}", f"s_and_b32 s{sWOFF}, s{sWOFF}, 15", f"s_lshl_b32 s{sWOFF}, s{sWOFF}, 18",
                (f"buffer_load_dwordx4 v{vDW}, s[{sWQ}:{sWQ+3}], s{sWOFF} offen{WNT} lds", ("w", k)),
                f"s_add_u32 m0, s{sDB}, {sb+896}",
                (f"buffer_load_dwordx4 v{vDW}, s[{sWQ}:{sWQ+3}], s{sWOFF} offen offset:128{WNT} lds", ("w", k))]

    def dma_kv(which, slot, tag=None):
        sb = (KBASE + KSREL[slot]) if which == "k" else VS[slot]
        vd, srd = (vDK, sK) if which == "k" else (vDV, sV)
        return [f"s_add_u32 m0, s{sDB}, {sb}",
                (f"buffer_load_dwordx4 v{vd}, s[{srd}:{srd+3}], s{sKVOFF} offen nt lds", tag),
                f"s_add_u32 m0, s{sDB}, {sb+896}",
                (f"buffer_load_dwordx4 v{vd}, s[{srd}:{srd+3}], s{sKVOFF} offen offset:128 nt lds", tag)]

    def xdma(u):
        out = [f"s_add_u32 s{sXOFF}, s{sK0}, {2*u}", f"s_and_b32 s{sXOFF}, s{sXOFF}, 15", f"s_lshl_b32 s{sXOFF}, s{sXOFF}, 6",
               f"s_add_u32 s{sXO2}, s{sXOFF}, {192*1024}", f"s_add_u32 s{sXOFF}, s{sXOFF}, s{sXROW}"]
        for j in range(8):
            so = sXOFF if j < 6 else sXO2
            out.append(f"s_add_u32 m0, s{sXB}, {j*1024}")
            if j not in (0, 6):
                out.append(f"s_add_u32 s{so}, s{so}, 8192")
            out.append((f"buffer_load_dwordx4 v{vX + (j & 1)}, s[{sX}:{sX+3}], s{so} offen{XNT} lds", ("x", u)))
        return out

    def xreg(k, t):
        return vXS + 32 * ((k >> 1) & 1) + 16 * (k & 1) + 4 * t

    def xreads(u):
        return [f"ds_read_b128 {v(xreg(2*u + e, t), 4)}, v{vX + 2 + e} offset:{t*2048}" for e in range(2) for t in range(4)]

    def kv_first(lst):
        for wh, tl in lst:
            A(f"s_mov_b32 s{sKVOFF}, {tl*8192}")
            for it in dma_kv(wh, tl, tag=(wh, tl)):
                S.do(it)

    for it in xdma(0) + dma_w(0) + dma_w(1) + dma_w(2):
        S.do(it)
    kvpro = {OPT["kv0"]: ("k", 0), OPT["kv0"] + 2: ("v", 0)}
    if OPT["warm"]:
        vw0, vw1 = 20, 21
        A(f"v_lshrrev_b32 v{vw0}, 1, v{vLn}")
        A(f"v_lshlrev_b32 v{vw0}, 13, v{vw0}")
        A(f"v_and_b32 v{vw1}, 1, v{vLn}")
        A(f"v_lshl_add_u32 v{vw0}, v{vw1}, 7, v{vw0}")
        A(f"v_lshlrev_b32 v{vw1}, 7, v{vLn}")
        A(f"s_and_b32 s{sT0}, s{sB}, 3\ns_lshl_b32 s{sT0}, s{sT0}, 2\ns_add_u32 s{sT0}, s{sT0}, s{sW_}\ns_lshl_b32 s{sT0}, s{sT0}, 18")
        A(f"s_and_b32 s{sT1}, s{sH}, 7\ns_lshl_b32 s{sT1}, s{sT1}, 2\ns_add_u32 s{sT1}, s{sT1}, s{sW_}\ns_mul_i32 s{sT1}, s{sT1}, {52*128}")
        A(f"buffer_load_dword v185, v{vw0}, s[{sWQ}:{sWQ+3}], s{sT0} offen")
        A(f"buffer_load_dword v186, v{vw1}, s[{sX}:{sX+3}], s{sT1} offen")
    if OPT["fuse"]:
        A(f"s_add_u32 s{sFL}, s24, {FLAG_OFF}\ns_addc_u32 s{sFL+1}, s25, 0\ns_mov_b32 s{sFL+2}, {512*128}\ns_mov_b32 s{sFL+3}, 0x20000")
        A(f"s_lshl_b32 s{sT0}, s2, 7")
        A(f"v_mov_b32 v{t0}, 0")
        A(f"buffer_store_dword v{t0}, v{t0}, s[{sFL}:{sFL+3}], s{sT0} offen sc1")
    A(f"s_lshl_b32 s{sT0}, s{sBLK}, 3\ns_add_u32 s{sT0}, s{sT0}, s{sB}\ns_mul_i32 s{sT0}, s{sT0}, {13*131072}")
    A(f"s_lshl_b32 s{sT1}, s{sH}, 12\ns_add_u32 s{sT0}, s{sT0}, s{sT1}")
    A(f"s_add_u32 s{sO}, s24, s{sT0}\ns_addc_u32 s{sO+1}, s25, 0\ns_sub_u32 s{sO+2}, {13*131072}, s{sT1}\ns_mov_b32 s{sO+3}, 0x20000")
    A(f"s_mov_b32 s{sSCALE}, 0x{f32bits(math.log2(math.e) / math.sqrt(128.0)):08x}")
    A(f"s_mov_b32 s{sLO}, 0x{f32bits(2.0 ** -40):08x}")
    A(f"s_mov_b32 s{sHI}, 0x{f32bits(2.0 ** 40):08x}")
    A(f"s_mul_i32 s{sTOFF}, s{sW_}, {3*131072}")
    A(f"v_lshrrev_b32 v{t0}, 3, v{vq}")
    A(f"v_lshlrev_b32 v{t0}, 10, v{t0}")
    A(f"v_and_b32 v{t1}, 7, v{vq}")
    A(f"v_lshl_add_u32 v{t0}, v{t1}, 7, v{t0}")
    A(f"v_add_u32 v{t0}, s{sXB}, v{t0}")
    A(f"v_lshrrev_b32 v{t1}, 1, v{vq}")
    A(f"v_xor_b32 v{t1}, v{t1}, v{vg}")
    A(f"v_lshl_add_u32 v{vX+2}, v{t1}, 4, v{t0}")
    A(f"v_xor_b32 v{t1}, 4, v{t1}")
    A(f"v_lshl_add_u32 v{vX+3}, v{t1}, 4, v{t0}")
    A(f"v_lshlrev_b32 v{t0}, 11, v{vg}")
    A(f"v_lshl_add_u32 v{t0}, v{vr}, 7, v{t0}")
    A(f"v_lshl_add_u32 v{t0}, v{vc}, 3, v{t0}")
    A(f"v_add_u32 v{t0}, {WBASE}, v{t0}")
    A(f"v_lshrrev_b32 v{t1}, 1, v{vr}")
    A(f"v_and_b32 v{t2}, 1, v{vg}")
    A(f"v_lshl_or_b32 v{t1}, v{t2}, 1, v{t1}")
    for p in range(4):
        A(f"v_xor_b32 v{t2}, {p}, v{t1}")
        A(f"v_lshl_add_u32 v{vA0+p}, v{t2}, 5, v{t0}")
    A(f"v_lshrrev_b32 v{t2}, 1, v{vW}")
    A(f"v_lshl_add_u32 v{t0}, v{t2}, 10, v{t0}")
    A(f"v_and_b32 v{t2}, 1, v{vW}")
    A(f"v_lshlrev_b32 v{t2}, 1, v{t2}")
    A(f"v_xor_b32 v{t1}, v{t1}, v{t2}")
    A(f"v_lshl_add_u32 v{vA0+4}, v{t1}, 5, v{t0}")
    A(f"v_xor_b32 v{t1}, 1, v{t1}")
    A(f"v_lshl_add_u32 v{vA0+5}, v{t1}, 5, v{t0}")

    NWF = 17
    fr = 0

    def wfrag_reads(k, dt):
        def f(slot):
            base = 4 * slot
            if dt < 8:
                ad, off = vA0 + (dt & 3), (k % NWS) * 8192 + (dt >> 2) * 1024
            else:
                ad, off = vA0 + 4 + (dt - 8), (k % NWS) * 8192
            return [f"ds_read_b64_tr_b16 {a(base + 2*hh, 2)}, v{ad} offset:{off + hh*512}" for hh in range(2)]
        return f

    A.wait_tag(("x", 0))
    for t in xreads(0):
        A(t)
    frags, mfs, events, q2 = [], [], {}, []

    def bar(tag):
        return [lambda: A.wait_tag(tag), "s_barrier"]
    for k in range(16):
        base = 26 * k
        bpos = 0 if k == 0 else 26 * (k - 1) + 12
        events.setdefault(bpos, []).extend(bar(("w", k)))
        if k == 0:
            events[0].append(stamp)
        for dt in range(10):
            frags.append(dict(reads=wfrag_reads(k, dt), uses=[], avail=bpos))
            f = len(frags) - 1
            for t in (range(3) if dt < 8 else [3]):
                d = v(vO + 32*t + 4*dt, 4) if t < 3 else v(vO + 96 + 4*(dt - 8), 4)
                frags[f]["uses"].append(len(mfs))
                mfs.append((f, d, v(xreg(k, t), 4), d if k else 0))
        if k >= 1 and k + 2 < 16:
            q2 += [(bpos, it) for it in dma_w(k + 2)]
        u = k >> 1
        if k == 0:
            q2 += [(1, it) for it in xdma(1)]
        if k % 2 == 1 and u + 1 < 8:
            q2.append((base + 4, lambda u=u: A.wait_tag(("x", u + 1))))
            q2 += [(base + 4, t, base + 24) for t in xreads(u + 1)]
            if u + 2 < 8:
                q2.append((base + 14, lambda u=u: A.prewait(f"v_mov_b32 v0, v{xreg(2*u + 3, 3)}")))
                q2 += [(base + 14, it) for it in xdma(u + 2)]
        if k in kvpro:
            wh, tl = kvpro[k]
            q2.append((base + 16, f"s_mov_b32 s{sKVOFF}, {tl*8192}"))
            q2 += [(base + 16, it) for it in dma_kv(wh, tl, tag=(wh, tl))]
        if k == 15:
            for wh, tl in (("k", 1), ("v", 1), ("k", 2), ("v", 2)):
                q2.append((bpos, f"s_mov_b32 s{sKVOFF}, {tl*8192}"))
                q2 += [(bpos, it) for it in dma_kv(wh, tl, tag=(wh, tl))]
    slots, q1 = frag_plan(frags, OPT["qslots"])
    mf = [f"{MF} {d}, {a(4*slots[f], 4)}, {bb}, {c}" for f, d, bb, c in mfs]
    q2.sort(key=lambda x: x[0])
    S.run(mf, [q1, q2], [], extra=2, events=events)

    stamp()
    tq = vSe

    def qfin(src0, dst_writer, tmp):
        for j in range(8):
            A(f"v_mul_f32 v{src0+j}, s{sSCALE}, v{src0+j}")
        for j in range(4):
            A(f"v_cvt_pk_bf16_f32 v{tmp+j}, v{src0+2*j}, v{src0+2*j+1}")
        A(f"v_permlane32_swap_b32 v{tmp}, v{tmp+2}")
        A(f"v_permlane32_swap_b32 v{tmp+1}, v{tmp+3}")
        A(f"v_permlane16_swap_b32 v{tmp}, v{tmp+2}")
        A(f"v_permlane16_swap_b32 v{tmp+1}, v{tmp+3}")
        dst_writer(tmp)
    A(f"v_mov_b32 v{vT+1}, s{sW_}")
    A(f"v_lshl_add_u32 v{vT+1}, v{vT+1}, 10, v{vL16}")
    qfin(vO + 96, lambda tmp: A(f"ds_write_b128 v{vT+1}, {v(tmp, 4)} offset:{Q13}"), tq)
    n = 1
    for t in range(3):
        for sidx in range(4):
            tmp = tq + 4 * (n % 6); n += 1
            qfin(vO + 32*t + 8*sidx,
                 lambda tmp, t=t, sidx=sidx: [A(f"v_accvgpr_write_b32 a{aQ + 16*t + 4*sidx + j}, v{tmp+j}") for j in range(4)],
                 tmp)
    ln = vT + 1
    q_, g_, r_, c_, x0, x1 = 0, 1, 2, 3, 4, 5
    A(f"v_lshrrev_b32 v{ln}, 4, v{vL16}")
    A(f"v_and_b32 v{q_}, 15, v{ln}")
    A(f"v_lshrrev_b32 v{g_}, 4, v{ln}")
    A(f"v_bfe_u32 v{r_}, v{ln}, 2, 2")
    A(f"v_and_b32 v{c_}, 3, v{ln}")
    A(f"v_lshrrev_b32 v{x0}, 3, v{q_}")
    A(f"v_lshlrev_b32 v{x0}, 11, v{x0}")
    A(f"v_and_b32 v{x1}, 7, v{q_}")
    A(f"v_lshl_add_u32 v{x0}, v{x1}, 7, v{x0}")
    A(f"v_add_u32 v{x0}, {KBASE}, v{x0}")
    A(f"v_lshrrev_b32 v{x1}, 1, v{q_}")
    A(f"v_xor_b32 v{x1}, v{x1}, v{g_}")
    A(f"v_lshl_add_u32 v{vA0}, v{x1}, 4, v{x0}")
    A(f"v_xor_b32 v{x1}, 4, v{x1}")
    A(f"v_lshl_add_u32 v{vA0+1}, v{x1}, 4, v{x0}")
    A(f"v_lshrrev_b32 v{x0}, 1, v{g_}")
    A(f"v_lshlrev_b32 v{x0}, 11, v{x0}")
    A(f"v_and_b32 v{x1}, 1, v{g_}")
    A(f"v_lshl_add_u32 v{x0}, v{x1}, 9, v{x0}")
    A(f"v_lshl_add_u32 v{x0}, v{r_}, 7, v{x0}")
    A(f"v_lshl_add_u32 v{x0}, v{c_}, 3, v{x0}")
    A(f"v_lshrrev_b32 v{c_}, 1, v{r_}")
    A(f"v_lshl_or_b32 v{x1}, v{x1}, 1, v{c_}")
    for p in range(4):
        A(f"v_xor_b32 v{c_}, {p}, v{x1}")
        A(f"v_lshl_add_u32 v{vA0+2+p}, v{c_}, 5, v{x0}")
    vKA, vVA = vA0, vA0 + 2

    def kread(slot, half, ks):
        return lambda fs: [f"ds_read_b128 {a(aF + 4*fs, 4)}, v{vKA + (ks & 1)} offset:{KSREL[slot] + half*4096 + (ks >> 1)*1024}"]

    def vread(slot, dt):
        return lambda fs: [f"ds_read_b64_tr_b16 {a(aF + 4*fs + 2*hh, 2)}, v{vVA + (dt & 3)} offset:{VS[slot] + hh*4096 + (dt >> 2)*1024}"
                           for hh in range(2)]

    def qread(ks):
        return lambda fs: [f"ds_read_b128 {a(aF + 4*fs, 4)}, v{vL16} offset:{Q13 + ks*1024}"]

    def exps(Sb, t, mode, tm=None):
        out = []
        tm = t if tm is None else tm
        for j in range(4):
            if mode == "sub":
                out.append((4, f"v_sub_f32 v{Sb+4*t+j}, v{Sb+4*t+j}, v{vM+tm}"))
            out.append((8, f"v_exp_f32 v{Sb+4*t+j}, v{Sb+4*t+j}"))
        return out

    def adds(Sb, t, tl=None):
        tl = t if tl is None else tl
        return [(4, f"v_add_f32 v{vL+tl}, v{vL+tl}, v{Sb+4*t+j}") for j in range(4)]

    def cvts(Sb, t, half):
        return [(4, f"v_cvt_pk_bf16_f32 v{vP+4*t+2*half+j}, v{Sb+4*t+2*j}, v{Sb+4*t+2*j+1}") for j in range(2)]

    def maxs(Sb, t, tm=None):
        tm = t if tm is None else tm
        return [(4, f"v_max3_f32 v{vM+tm}, v{vM+tm}, v{Sb+4*t+2*j}, v{Sb+4*t+2*j+1}") for j in range(2)]

    PRE = 3

    def pre_list(i, owner):
        if owner:
            return [kread(i & 3, 1, 0), qread(0), kread(i & 3, 0, 0)]
        return [kread(i & 3, 1, ks) for ks in range(PRE)]

    def prefetch(i, owner=False):
        for sl, r in enumerate(pre_list(i, owner)):
            for t in r(sl):
                A(t)

    def step(i, mode, owner):
        frags = []
        mfs = []

        def addf(reads):
            frags.append(dict(reads=reads, uses=[]))
            return len(frags) - 1

        def addm(fn, *fids):
            for f in fids:
                frags[f]["uses"].append(len(mfs))
            mfs.append((fn, fids))

        def qk(slot, half, Sb, with13=False):
            for ks in range(4):
                f = addf(kread(slot, half, ks))
                for t in range(3):
                    d = v(Sb + 4*t, 4)
                    addm(lambda sl, d=d, t=t, ks=ks: f"{MF} {d}, {a(aF + 4*sl[0], 4)}, {a(aQ + 16*t + 4*ks, 4)}, {d if ks else 0}", f)
                if with13:
                    fq = addf(qread(ks))
                    f0 = addf(kread(slot, 0, ks))
                    for fk, hf in ((f, 1), (f0, 0)):
                        d = v(vS13 + 4*hf, 4)
                        addm(lambda sl, d=d, ks=ks: f"{MF} {d}, {a(aF + 4*sl[0], 4)}, {a(aF + 4*sl[1], 4)}, {d if ks else 0}", fk, fq)

        def pv(tiles):
            for dt in range(8):
                f = addf(vread(i & 3, dt))
                for t in tiles:
                    o = v(vO + 32*t + 4*dt, 4)
                    p = v(vP + 4*t, 4) if t < 3 else v(vS13, 4)
                    addm(lambda sl, o=o, p=p: f"{MF} {o}, {a(aF + 4*sl[0], 4)}, {p}, {o}", f)
        qk(i & 3, 1, vSo, owner)
        p2 = len(mfs)
        qk((i + 1) & 3, 0, vSe)
        pv0 = len(mfs)
        if mode != "max":
            if owner:
                pv([0, 1])
                pvB = len(mfs)
                pv([2, 3])
            else:
                pv([0, 1, 2])
        slots, rd = frag_plan(frags, NFR, PRE)
        mf = [fn([slots[f] for f in fids]) for fn, fids in mfs]
        va = []
        deadlines = {p2: 1}
        if mode == "max":
            for t in range(3):
                va += [(0, c, x) for c, x in maxs(vSe, t)]
            for t in range(3):
                va += [(p2 + 2, c, x) for c, x in maxs(vSo, t)]
        else:
            for t in range(3):
                va += [(0, c, x) for c, x in cvts(vSe, t, 0)]
                va += [(0, c, x) for c, x in adds(vSe, t)]
            if owner:
                for t in range(2):
                    va += [(p2 - 2, c, x) for c, x in exps(vSo, t, mode) + cvts(vSo, t, 1)]
                deadlines[pv0] = p2
                va += [(p2, c, x) for c, x in exps(vSo, 2, mode) + cvts(vSo, 2, 1)]
                for half in range(2):
                    va += [(p2 + 2, c, x) for c, x in exps(vS13, half, mode, 3)]
                for half in range(2):
                    va += [(p2 + 2, c, x) for c, x in adds(vS13, half, 3)]
                for j in range(4):
                    va.append((p2 + 2, 4, f"v_cvt_pk_bf16_f32 v{vS13+j}, v{vS13+2*j}, v{vS13+2*j+1}"))
                deadlines[pvB] = p2 + 3
            else:
                for t in range(3):
                    va += [(p2 + t, c, x) for c, x in exps(vSo, t, mode) + cvts(vSo, t, 1)]
                    deadlines[pv0 + t] = p2 + t + 1
            for t in range(3):
                va += [(pv0, c, x) for c, x in adds(vSo, t)]
            for t in range(3):
                va += [(pv0 + 2, c, x) for c, x in exps(vSe, t, mode)]
        e0 = 2 if mode == "max" else pv0 + 4
        dm = [(e0, it) for it in dma_kv("k", (i + 3) & 3) + dma_kv("v", (i + 3) & 3)]
        dm.append((e0, f"s_add_u32 s{sKVOFF}, s{sKVOFF}, 8192"))
        S.run(mf, [rd, dm], [va], extra=OPT["extra"], deadlines=deadlines)

    def extra_serial(i, mode, lab):
        A.wait_lgkm(0)
        A(f"s_cmp_lg_u32 s{sW_}, {i}")
        A(f"s_cbranch_scc1 L_{lab}_x{i}")
        S13 = vSo
        for ks in range(4):
            for t in qread(ks)(0) + kread(i & 3, 0, ks)(1) + kread(i & 3, 1, ks)(2):
                A(t)
            for half in range(2):
                d = v(S13 + 4*half, 4)
                A(f"{MF} {d}, {a(aF + 4*(1 + half), 4)}, {a(aF, 4)}, {d if ks else 0}")
            A("s_nop 7")
        if mode == "max":
            for half in range(2):
                for c, x in maxs(S13, half, tm=3):
                    A(x)
        else:
            for half in range(2):
                for c, x in exps(S13, half, mode, tm=3):
                    A(x)
            for half in range(2):
                for j in range(2):
                    A(f"v_cvt_pk_bf16_f32 v{vP+2*half+j}, v{S13+4*half+2*j}, v{S13+4*half+2*j+1}")
                for c, x in adds(S13, half, tl=3):
                    A(x)
            for dt in range(8):
                for t in vread(i & 3, dt)(dt % NFR):
                    A(t)
                o = v(vO + 96 + 4*dt, 4)
                A(f"{MF} {o}, {a(aF + 4*(dt % NFR), 4)}, {v(vP, 4)}, {o}")
        A.wait_lgkm(0)
        A("s_nop 7")
        A.label(f"L_{lab}_x{i}")
        A("s_nop 1")

    def attention(mode, lab):
        A.comment(f"attention pass mode={mode}")
        A(f"s_mov_b32 s{sKVOFF}, {3*8192}")
        if mode != "max":
            for i in range(128):
                A(f"v_mov_b32 v{vO+i}, 0")
            for t in range(4):
                A(f"v_mov_b32 v{vL+t}, 0")
        else:
            for t in range(4):
                A(f"v_mov_b32 v{vM+t}, 0xff800000")
        A.auto_vm = False
        A("s_waitcnt vmcnt(10) lgkmcnt(0)")
        A("s_barrier")
        for ks in range(4):
            for t in kread(0, 0, ks)(ks):
                A(t)
        for ks in range(4):
            for t in range(3):
                d = v(vSe + 4*t, 4)
                A(f"{MF} {d}, {a(aF + 4*ks, 4)}, {a(aQ + 16*t + 4*ks, 4)}, {d if ks else 0}")
        if mode != "max":
            for t in range(3):
                for c, x in exps(vSe, t, mode):
                    A(x)
        A(f"s_mov_b32 s{sCNT}, 0")
        prof = PROF and mode == "fast"
        if prof:
            A("s_mov_b32 s90, 0\ns_mov_b32 s91, 0")
            A("s_memtime s[96:97]")
            A("s_waitcnt lgkmcnt(0)")
        A.raw(".p2align 3")
        A.label(f"L_{lab}_loop")
        st0 = A.state()[0]

        def sync(i):
            if prof:
                sv = list(A.lgkm)
                A("s_memtime s[92:93]")
                A("s_waitcnt vmcnt(6)")
                A("s_memtime s[94:95]")
                A("s_barrier")
                A("s_memtime s[88:89]")
                A("s_waitcnt lgkmcnt(0)")
                A("s_sub_u32 s92, s94, s92\ns_add_u32 s90, s90, s92\ns_sub_u32 s94, s88, s94\ns_add_u32 s91, s91, s94")
                A.lgkm = sv
            else:
                A("s_waitcnt vmcnt(6)")
                A("s_barrier")
            if OPT["prio"] == 1 and mode == "fast":
                A(f"s_setprio {(i & 1)}")
        for i in range(4):
            if mode == "fast":
                A(f"s_cmp_eq_u32 s{sW_}, {i if not OPT['noextra'] else 7}")
                A(f"s_cbranch_scc1 L_{lab}_o{i}")
                sv = (list(A.lgkm), list(A.hist))
                prefetch(i)
                sync(i)
                step(i, mode, False)
                A(f"s_branch L_{lab}_j{i}")
                s1 = A.state()[0]
                A.label(f"L_{lab}_o{i}")
                A.lgkm, A.hist = list(sv[0]), list(sv[1])
                prefetch(i, True)
                sync(i)
                step(i, mode, True)
                assert A.state()[0] == s1
                A.label(f"L_{lab}_j{i}")
            else:
                prefetch(i)
                sync(i)
                step(i, mode, False)
                extra_serial(i, mode, lab)
        A(f"s_add_u32 s{sCNT}, s{sCNT}, 1")
        A(f"s_cmp_lt_u32 s{sCNT}, 4")
        A(f"s_cbranch_scc1 L_{lab}_loop")
        assert A.state()[0] == st0, (A.state()[0], st0)
        if prof:
            A("s_memtime s[98:99]")
            A("s_waitcnt lgkmcnt(0)")
            A("s_sub_u32 s96, s98, s96")
        A("s_waitcnt vmcnt(0) lgkmcnt(0)")
        A.vm = []
        A.auto_vm = True
        A("s_barrier")

    def xlane(reg, op, tmp):
        A(f"v_mov_b32 v{tmp}, v{reg}")
        A(f"v_permlane32_swap_b32 v{reg}, v{tmp}")
        A(f"{op} v{reg}, v{reg}, v{tmp}")
        A(f"v_mov_b32 v{tmp}, v{reg}")
        A(f"v_permlane16_swap_b32 v{reg}, v{tmp}")
        A(f"{op} v{reg}, v{reg}, v{tmp}")

    OST = {0: "", 1: " nt", 2: " sc1", 3: " sc0 sc1"}[OPT["ost"]]

    def epilogue(lab, check):
        if OPT["eprio"]:
            A("s_setprio 3")
        for t in range(4):
            xlane(vL + t, "v_add_f32", vT)
        wl = vT + 1
        A(f"v_mov_b32 v{wl}, s{sW_}")
        A(f"v_lshl_add_u32 v{vT+2}, v{wl}, 13, v{vL16}")
        for dt in range(8):
            A(f"ds_write_b128 v{vT+2}, {v(vO + 96 + 4*dt, 4)} offset:{dt*1024}")
        A(f"v_lshrrev_b32 v{vT}, 2, v{vL16}")
        A(f"v_lshl_add_u32 v{vT+2}, v{wl}, 8, v{vT}")
        A(f"ds_write_b32 v{vT+2}, v{vL+3} offset:{LMRG}")
        if check:
            for t in range(3):
                A(f"v_cmp_nle_f32 vcc, s{sLO}, v{vL+t}")
                if t == 0:
                    A(f"s_mov_b64 s[{sT1}:{sT2}], vcc")
                else:
                    A(f"s_or_b64 s[{sT1}:{sT2}], s[{sT1}:{sT2}], vcc")
                A(f"v_cmp_nge_f32 vcc, s{sHI}, v{vL+t}")
                A(f"s_or_b64 s[{sT1}:{sT2}], s[{sT1}:{sT2}], vcc")
            A(f"s_cmp_lg_u64 s[{sT1}:{sT2}], 0")
            A(f"s_cselect_b32 s{sT1}, 1, 0")
            A(f"v_mov_b32 v{vSe}, s{sT1}")
            A(f"v_lshlrev_b32 v{vSe+1}, 2, v{wl}")
            A(f"ds_write_b32 v{vSe+1}, v{vSe} offset:{LMRG+1024}")
        A.wait_lgkm(0)
        A("s_barrier")
        for j in range(4):
            A(f"ds_read_b32 v{vSe+j}, v{vT} offset:{LMRG + 256*j}")
        if check:
            A(f"v_mov_b32 v{vSe+8}, 0")
            A(f"ds_read_b128 {v(vSe+4, 4)}, v{vSe+8} offset:{LMRG+1024}")
        A(f"v_lshl_add_u32 v{vT+2}, v{wl}, 11, v{vL16}")
        pr = vO + 96
        for j in range(4):
            for e in range(2):
                A(f"ds_read_b128 {v(pr + 8*j + 4*e, 4)}, v{vT+2} offset:{j*8192 + e*1024}")
        A(f"v_add_f32 v{vSe}, v{vSe}, v{vSe+1}")
        A(f"v_add_f32 v{vSe+2}, v{vSe+2}, v{vSe+3}")
        A(f"v_add_f32 v{vL+3}, v{vSe}, v{vSe+2}")
        if check:
            A(f"v_or_b32 v{vSe+4}, v{vSe+4}, v{vSe+5}")
            A(f"v_or3_b32 v{vSe+4}, v{vSe+4}, v{vSe+6}, v{vSe+7}")
            A(f"v_cmp_ne_u32 vcc, 0, v{vSe+4}")
            A(f"s_mov_b64 s[{sT1}:{sT2}], vcc")
            A(f"v_cmp_nle_f32 vcc, s{sLO}, v{vL+3}")
            A(f"s_or_b64 s[{sT1}:{sT2}], s[{sT1}:{sT2}], vcc")
            A(f"v_cmp_nge_f32 vcc, s{sHI}, v{vL+3}")
            A(f"s_or_b64 s[{sT1}:{sT2}], s[{sT1}:{sT2}], vcc")
            A.wait_lgkm(0)
            A(f"s_cmp_lg_u64 s[{sT1}:{sT2}], 0")
            if not OPT["nocheck"]:
                A(f"s_cbranch_scc1 L_{name}_slow")
        for t in range(4):
            A(f"v_rcp_f32 v{vL+t}, v{vL+t}")
        n = 0
        for t in range(3):
            A(f"s_add_u32 s{sT1}, s{sTOFF}, {t*131072}")
            for sidx in range(4):
                src = vO + 32*t + 8*sidx
                tmp = vSe + 4 * (n % 9); n += 1
                for j in range(8):
                    A(f"v_mul_f32 v{src+j}, v{src+j}, v{vL+t}")
                for j in range(4):
                    A(f"v_cvt_pk_bf16_f32 v{tmp+j}, v{src+2*j}, v{src+2*j+1}")
                A(f"buffer_store_dwordx4 {v(tmp, 4)}, v{vL16}, s[{sO}:{sO+3}], s{sT1} offen offset:{sidx*1024}{OST}")
        for j in range(8):
            A(f"v_add_f32 v{pr+j}, v{pr+j}, v{pr+8+j}")
            A(f"v_add_f32 v{pr+16+j}, v{pr+16+j}, v{pr+24+j}")
        for j in range(8):
            A(f"v_add_f32 v{pr+j}, v{pr+j}, v{pr+16+j}")
        tmp = vSe + 4 * (n % 9)
        for j in range(8):
            A(f"v_mul_f32 v{pr+j}, v{pr+j}, v{vL+3}")
        for j in range(4):
            A(f"v_cvt_pk_bf16_f32 v{tmp+j}, v{pr+2*j}, v{pr+2*j+1}")
        A(f"s_lshl_b32 s{sT1}, s{sW_}, 10")
        A(f"s_add_u32 s{sT1}, s{sT1}, {12*131072}")
        A(f"buffer_store_dwordx4 {v(tmp, 4)}, v{vL16}, s[{sO}:{sO+3}], s{sT1} offen{OST}")
        if OPT["fuse"]:
            A(f"s_branch L_{name}_oproj")
            A.vm = []
            return
        A.vm = []
        if check:
            stamp()
            stamp_flush()
        A("s_endpgm")

    stamp()
    if OPT["prio"] == 4:
        A("s_setprio 0")
        A("s_cmp_lt_u32 s2, 256")
        A(f"s_cbranch_scc1 L_{name}_p4")
        A("s_setprio 1")
        A.label(f"L_{name}_p4")
    if OPT["prio"] == 2:
        A("s_cmp_lt_u32 s2, 256")
        A(f"s_cbranch_scc1 L_{name}_p2")
        A("s_setprio 2")
        A.label(f"L_{name}_p2")
    attention("fast", name + "_f")
    stamp()
    epilogue(name + "_f", True)

    A.label(f"L_{name}_slow")
    A.barrier_hist(); A.lgkm = []; A.vm = []
    A("s_nop 7")
    A("s_barrier")
    kvall = (("k", 0), ("v", 0), ("k", 1), ("v", 1), ("k", 2), ("v", 2))
    kv_first(kvall)
    attention("max", name + "_m")
    for t in range(4):
        xlane(vM + t, "v_max_f32", vT)
    A(f"v_lshrrev_b32 v{vT}, 2, v{vL16}")
    A(f"v_mov_b32 v{vT+1}, s{sW_}")
    A(f"v_lshl_add_u32 v{vT+2}, v{vT+1}, 8, v{vT}")
    A(f"ds_write_b32 v{vT+2}, v{vM+3} offset:{LMRG}")
    A.wait_lgkm(0)
    A("s_barrier")
    for j in range(4):
        A(f"ds_read_b32 v{vSe+j}, v{vT} offset:{LMRG + 256*j}")
    A(f"v_max_f32 v{vSe}, v{vSe}, v{vSe+1}")
    A(f"v_max3_f32 v{vM+3}, v{vSe}, v{vSe+2}, v{vSe+3}")
    kv_first(kvall)
    attention("sub", name + "_s")
    epilogue(name + "_s", False)

    if OPT["fuse"]:
        A.label(f"L_{name}_oproj")
        A.barrier_hist(); A.lgkm = []; A.vm = []
        sOS, sWO, sP, sDBG, sOUT = 28, 32, 36, 40, 44
        sHL, sHG, sGRP, sOOFF = 56, 57, 62, 63
        OLD = " sc1" if OPT["oldsc1"] else ""
        stamp()
        A("s_waitcnt vmcnt(0)")
        stamp()
        A("s_load_dwordx2 s[8:9], s[0:1], 32")
        A("s_load_dwordx2 s[10:11], s[0:1], 72")
        A("s_load_dwordx4 s[12:15], s[0:1], 80")
        A("s_barrier")
        A(f"s_and_b32 s{sHL}, s{sH}, 7")
        A(f"s_lshr_b32 s{sHG}, s{sH}, 3")
        A(f"s_lshl_b32 s{sGRP}, s{sBLK}, 3\ns_add_u32 s{sGRP}, s{sGRP}, s{sB}")
        A(f"s_cmp_eq_u32 s{sBLK}, 0")
        A("s_waitcnt lgkmcnt(0)")
        A("s_cselect_b64 s[8:9], s[8:9], s[10:11]")
        A(f"s_mov_b32 s{sDBG}, s14\ns_mov_b32 s{sDBG+1}, s15\ns_mov_b32 s{sDBG+2}, 256\ns_mov_b32 s{sDBG+3}, 0x20000")
        A(f"s_lshl_b32 s{sT0}, s{sGRP}, 2\ns_add_u32 s{sT0}, s{sT0}, s{sHG}\ns_lshl_b32 s{sT0}, s{sT0}, 2")
        vZ, vOne = 168, 169
        A(f"v_mov_b32 v{vZ}, 0")
        A(f"v_mov_b32 v{vOne}, 1")
        A(f"s_mov_b32 s{sCNT}, 0")
        A(f"s_cmp_lg_u32 s{sW_}, 0")
        A(f"s_cbranch_scc1 L_{name}_noarr")
        A("s_mov_b64 exec, 1")
        if OPT["wbl2"]:
            A("buffer_wbl2 sc1")
            A("s_waitcnt vmcnt(0)")
        A(f"buffer_atomic_add v{vOne}, v{vZ}, s[{sDBG}:{sDBG+3}], s{sT0} offen sc0 sc1")
        A("s_waitcnt vmcnt(0)")
        A(f"v_readfirstlane_b32 s{sCNT}, v{vOne}")
        A("s_mov_b64 exec, -1")
        A(f"s_and_b32 s{sCNT}, s{sCNT}, 0xff")
        A(f"s_cmp_lg_u32 s{sCNT}, 7")
        A(f"s_cbranch_scc1 L_{name}_noarr")
        A("s_mov_b64 exec, 0xff")
        A(f"v_lshlrev_b32 v{vOne+1}, 6, v{vL16}")
        A(f"v_mov_b32 v{vOne}, 1")
        A(f"s_andn2_b32 s{sT1}, s2, 0x38")
        A(f"s_lshl_b32 s{sT1}, s{sT1}, 7")
        A(f"buffer_store_dword v{vOne}, v{vOne+1}, s[{sFL}:{sFL+3}], s{sT1} offen sc1")
        A("s_mov_b64 exec, -1")
        A.label(f"L_{name}_noarr")
        if OPT["eprio"]:
            A("s_setprio 0")
        A(f"s_mul_i32 s{sT1}, s{sGRP}, {13*131072}")
        A(f"s_lshl_b32 s{sT2}, s{sHG}, 15\ns_add_u32 s{sT1}, s{sT1}, s{sT2}")
        A(f"s_add_u32 s{sOS}, s24, s{sT1}\ns_addc_u32 s{sOS+1}, s25, 0\ns_sub_u32 s{sOS+2}, {13*131072}, s{sT2}\ns_mov_b32 s{sOS+3}, 0x20000")
        A(f"s_lshl_b32 s{sT1}, s{sHG}, 20\ns_lshl_b32 s{sT2}, s{sHL}, 7\ns_add_u32 s{sT1}, s{sT1}, s{sT2}")
        A(f"s_add_u32 s{sWO}, s8, s{sT1}\ns_addc_u32 s{sWO+1}, s9, 0\ns_sub_u32 s{sWO+2}, 0x100000, s{sT2}\ns_mov_b32 s{sWO+3}, 0x20000")
        A(f"s_lshl_b32 s{sT1}, s{sGRP}, 3\ns_add_u32 s{sT1}, s{sT1}, s{sHL}\ns_mul_i32 s{sT1}, s{sT1}, {4*53248}\ns_add_u32 s{sT1}, s{sT1}, {PART_OFF}")
        A(f"s_add_u32 s{sP}, s24, s{sT1}\ns_addc_u32 s{sP+1}, s25, 0\ns_mov_b32 s{sP+2}, {4*53248}\ns_mov_b32 s{sP+3}, 0x20000")
        A(f"s_mul_i32 s{sT1}, s{sB}, {208*2048}\ns_lshl_b32 s{sT2}, s{sBLK}, 10\ns_add_u32 s{sT1}, s{sT1}, s{sT2}\ns_lshl_b32 s{sT2}, s{sHL}, 7\ns_add_u32 s{sT1}, s{sT1}, s{sT2}")
        A(f"s_add_u32 s{sOUT}, s12, s{sT1}\ns_addc_u32 s{sOUT+1}, s13, 0\ns_sub_u32 s{sOUT+2}, {8*208*2048}, s{sT1}\ns_mov_b32 s{sOUT+3}, 0x20000")
        NX, PF, NSL = 10, 9, 12
        O13L = NSL * 4096
        vAcc, vB0 = 0, 52
        vXO, vDWo, vAW = 160, 164, 172
        l_, g_, r_, c_, x0, x1, w_ = 177, 178, 179, 180, 181, 182, 183

        def breg(k, t):
            st = k % NX
            return v(vB0 + 12*st + 4*t, 4) if st < 9 else a(48 + 4*t, 4)
        A(f"v_lshrrev_b32 v{l_}, 4, v{vL16}")
        A(f"v_mov_b32 v{w_}, s{sW_}")
        A(f"v_lshrrev_b32 v{g_}, 4, v{l_}")
        A(f"v_bfe_u32 v{r_}, v{l_}, 2, 2")
        A(f"v_and_b32 v{c_}, 3, v{l_}")
        A(f"v_lshlrev_b32 v{vXO+3}, 2, v{l_}")
        A(f"v_lshl_add_u32 v{vXO+3}, v{w_}, 8, v{vXO+3}")
        A(f"v_add_u32 v{vXO+3}, {12*131072}, v{vXO+3}")
        A(f"v_add_u32 v{vXO}, s{sTOFF}, v{vL16}")
        A(f"v_add_u32 v{vXO+1}, 131072, v{vXO}")
        A(f"v_add_u32 v{vXO+2}, 262144, v{vXO}")
        A(f"v_lshrrev_b32 v{x0}, 3, v{l_}")
        A(f"v_lshl_add_u32 v{x0}, v{w_}, 3, v{x0}")
        A(f"v_and_b32 v{x1}, 7, v{l_}")
        A(f"v_lshlrev_b32 v{vDWo}, 1, v{g_}")
        A(f"v_xor_b32 v{vDWo}, v{vDWo}, v{x1}")
        A(f"v_lshlrev_b32 v{vDWo}, 4, v{vDWo}")
        A(f"v_lshl_add_u32 v{vDWo}, v{x0}, 10, v{vDWo}")
        A(f"v_lshrrev_b32 v{x0}, 1, v{g_}")
        A(f"v_lshlrev_b32 v{x0}, 10, v{x0}")
        A(f"v_and_b32 v{x1}, 1, v{g_}")
        A(f"v_lshl_add_u32 v{x0}, v{x1}, 9, v{x0}")
        A(f"v_lshl_add_u32 v{x0}, v{r_}, 7, v{x0}")
        A(f"v_lshl_add_u32 v{x0}, v{c_}, 3, v{x0}")
        A(f"v_lshrrev_b32 v{c_}, 1, v{r_}")
        A(f"v_lshl_or_b32 v{x1}, v{x1}, 1, v{c_}")
        for p in range(4):
            A(f"v_xor_b32 v{c_}, {p}, v{x1}")
            A(f"v_lshl_add_u32 v{vAW+p}, v{c_}, 5, v{x0}")
        A(f"v_xor_b32 v{c_}, v{w_}, v{x1}")
        A(f"v_lshl_add_u32 v{vAW+4}, v{c_}, 5, v{x0}")
        A(f"s_lshl_b32 s{sDB}, s{sW_}, 10")

        sKR = 53
        A(f"s_lshl_b32 s{sKR}, s{sHL}, 2")
        if not OPT["orot"]:
            A(f"s_mov_b32 s{sKR}, 0")

        def koff(reg, k, sh):
            return [f"s_add_u32 s{reg}, s{sKR}, {k}", f"s_and_b32 s{reg}, s{reg}, 31", f"s_lshl_b32 s{reg}, s{reg}, {sh}"]

        def dma_wo(k):
            return [f"s_add_u32 m0, s{sDB}, {(k % NSL)*4096}"] + koff(sWOFF, k, 15) + [
                    (f"buffer_load_dwordx4 v{vDWo}, s[{sWO}:{sWO+3}], s{sWOFF} offen lds", ("w", k))]

        A(f"s_lshl_b32 s{sXO2}, s{sW_}, 8")

        def oload(k):
            return koff(sOOFF, k, 10) + [
                (f"buffer_load_dwordx4 {breg(k, t)}, v{vXO+t}, s[{sOS}:{sOS+3}], s{sOOFF} offen{OLD}", ("x", k))
                for t in range(3)]

        def o13dma(k):
            return [f"s_add_u32 m0, s{sXO2}, {O13L + (k % NSL)*1024}"] + koff(sKVOFF, k, 10) + [
                    (f"buffer_load_dword v{vXO+3}, s[{sOS}:{sOS+3}], s{sKVOFF} offen{OLD} lds", ("o", k))]
        NPRE = 4 if OPT["orot"] else 0
        for k in range(NSL - 1):
            for it in dma_wo(k):
                S.do(it)
            if k < NPRE:
                for it in oload(k) + o13dma(k):
                    S.do(it)
        vm_saved = list(A.vm)
        A(f"s_cmp_lg_u32 s{sW_}, 0")
        A(f"s_cbranch_scc1 L_{name}_nopoll")
        A(f"s_cmp_eq_u32 s{sCNT}, 7")
        A(f"s_cbranch_scc1 L_{name}_polled")
        A(f"s_mov_b32 s{sCNT}, 0")
        A(f"s_lshl_b32 s{sT0}, s2, 7")
        A.label(f"L_{name}_poll")
        A(f"buffer_load_dword v{vOne}, v{vZ}, s[{sFL}:{sFL+3}], s{sT0} offen sc1")
        A("s_waitcnt vmcnt(0)")
        A(f"v_readfirstlane_b32 s{sT1}, v{vOne}")
        A(f"s_cmp_eq_u32 s{sT1}, 1")
        A(f"s_cbranch_scc1 L_{name}_polled")
        A("s_sleep 8")
        A(f"s_add_u32 s{sCNT}, s{sCNT}, 1")
        A(f"s_cmp_lt_u32 s{sCNT}, 0x100000")
        A(f"s_cbranch_scc1 L_{name}_poll")
        A.label(f"L_{name}_polled")
        if not OPT["noinv"]:
            A("buffer_inv sc1")
        A("s_waitcnt vmcnt(0)")
        A.label(f"L_{name}_nopoll")
        A.vm = vm_saved
        A("s_barrier")
        stamp()
        for k in range(NPRE, PF):
            for it in oload(k) + o13dma(k):
                S.do(it)
        for k in range(PF, NSL - 1):
            for it in o13dma(k):
                S.do(it)
        frags, mfs, events, q2 = [], [], {}, []
        for k in range(32):
            base = 13 * k
            j = k >> 1
            bpos = 0 if j == 0 else 13 * (2*j - 1)
            if k % 2 == 0:
                events.setdefault(bpos, []).extend([lambda k=k: A.wait_tag(("w", k), ("w", k + 1), ("o", k), ("o", k + 1)), "s_barrier"])
                if j >= 1:
                    for kk in (2*j + 9, 2*j + 10):
                        if kk < 32 and not OPT["nowo"]:
                            q2 += [(bpos, it) for it in dma_wo(kk) + o13dma(kk)]
            fl = []
            for nt in range(5):
                frags.append(dict(reads=(lambda sl, nt=nt, k=k: [f"ds_read_b64_tr_b16 {a(4*sl + 2*hh, 2)}, v{vAW+nt} offset:{(k % NSL)*4096 + hh*2048}" for hh in range(2)]),
                                  uses=[], avail=bpos))
                fl.append(len(frags) - 1)
                if nt < 4:
                    for t in range(3):
                        d = v(vAcc + 16*t + 4*nt, 4)
                        frags[-1]["uses"].append(len(mfs))
                        mfs.append((fl[-1], None, d, breg(k, t), d if k else 0))
            frags.append(dict(reads=(lambda sl, k=k: [f"ds_read_b128 {a(4*sl, 4)}, v{vL16} offset:{O13L + (k % NSL)*1024}"]), uses=[len(mfs)], avail=bpos))
            frags[fl[4]]["uses"].append(len(mfs))
            d = v(vAcc + 48, 4)
            mfs.append((fl[4], len(frags) - 1, d, None, d if k else 0))
            if k + PF < 32 and not OPT["nooload"]:
                q2 += [(base, it) for it in oload(k + PF)]
        slots, q1 = frag_plan(frags, 12)
        mf = [f"{MF} {d}, {a(4*slots[f], 4)}, {bb if f2 is None else a(4*slots[f2], 4)}, {c}" for f, f2, d, bb, c in mfs]
        q2.sort(key=lambda x: x[0])
        S.run(mf, [q1, q2], [], extra=2, events=events)
        stamp()
        A(f"s_mul_i32 s{sT1}, s{sHG}, 53248")
        A(f"s_mul_i32 s{sT2}, s{sW_}, {3*4096}")
        A(f"s_add_u32 s{sOOFF}, s{sT1}, s{sT2}")
        for t in range(3):
            for nt in range(4):
                A(f"buffer_store_dwordx4 {v(vAcc + 16*t + 4*nt, 4)}, v{vL16}, s[{sP}:{sP+3}], s{sOOFF} offen offset:{nt*1024} sc1")
            A(f"s_add_u32 s{sOOFF}, s{sOOFF}, 4096")
        A(f"s_lshl_b32 s{sWOFF}, s{sW_}, 10\ns_add_u32 s{sWOFF}, s{sWOFF}, {12*4096}")
        A(f"s_add_u32 s{sOOFF}, s{sT1}, s{sWOFF}")
        A(f"buffer_store_dwordx4 {v(vAcc + 48, 4)}, v{vL16}, s[{sP}:{sP+3}], s{sOOFF} offen sc1")
        A("s_waitcnt vmcnt(0)")
        A("s_barrier")
        A(f"s_lshr_b32 s{sT0}, s{sHL}, 1\ns_lshl_b32 s{sT1}, s{sGRP}, 2\ns_add_u32 s{sT0}, s{sT0}, s{sT1}\ns_lshl_b32 s{sT0}, s{sT0}, 2")
        A(f"s_and_b32 s{sT1}, s{sHL}, 1\ns_lshl_b32 s{sT1}, s{sT1}, 3\ns_add_u32 s{sT1}, s{sT1}, 8")
        A(f"s_cmp_lg_u32 s{sW_}, 0")
        A(f"s_cbranch_scc1 L_{name}_noarr2")
        A(f"s_lshl_b32 s{sXO2}, 1, s{sT1}")
        A(f"v_mov_b32 v{vOne}, s{sXO2}")
        A("s_mov_b64 exec, 1")
        A(f"buffer_atomic_add v{vOne}, v{vZ}, s[{sDBG}:{sDBG+3}], s{sT0} offen sc0 sc1")
        A("s_waitcnt vmcnt(0)")
        A(f"ds_write_b32 v{vZ}, v{vOne} offset:65280")
        A("buffer_inv sc1")
        A("s_waitcnt vmcnt(0) lgkmcnt(0)")
        A("s_mov_b64 exec, -1")
        A.label(f"L_{name}_noarr2")
        A.vm = []; A.lgkm = []
        A("s_barrier")
        A(f"ds_read_b32 v{vOne}, v{vZ} offset:65280")
        A("s_waitcnt lgkmcnt(0)")
        A(f"v_readfirstlane_b32 s{sXO2}, v{vOne}")
        A(f"s_lshr_b32 s{sXO2}, s{sXO2}, s{sT1}")
        A(f"s_and_b32 s{sXO2}, s{sXO2}, 0xff")
        A(f"s_cmp_lg_u32 s{sXO2}, 3")
        if PROF:
            A(f"s_cbranch_scc1 L_{name}_fin")
        else:
            A(f"s_cbranch_scc1 L_{name}_end")
        for o in range(1, 4):
            A(f"s_add_u32 s{sT1}, s{sHG}, {o}\ns_and_b32 s{sT1}, s{sT1}, 3\ns_mul_i32 s{sT1}, s{sT1}, 53248")
            A(f"s_add_u32 s{sOOFF}, s{sT1}, s{sT2}")
            base = vB0 + 52 * ((o - 1) % 2)
            for t in range(3):
                for nt in range(4):
                    A(f"buffer_load_dwordx4 {v(base + 16*t + 4*nt, 4)}, v{vL16}, s[{sP}:{sP+3}], s{sOOFF} offen offset:{nt*1024} sc1")
                A(f"s_add_u32 s{sOOFF}, s{sOOFF}, 4096")
            A(f"s_add_u32 s{sOOFF}, s{sT1}, s{sWOFF}")
            A(f"buffer_load_dwordx4 {v(base + 48, 4)}, v{vL16}, s[{sP}:{sP+3}], s{sOOFF} offen sc1")
            if o >= 2:
                pb = vB0 + 52 * ((o - 2) % 2)
                for j in range(52):
                    A(f"v_add_f32 v{vAcc+j}, v{vAcc+j}, v{pb+j}")
        pb = vB0 + 52 * 0
        for j in range(52):
            A(f"v_add_f32 v{vAcc+j}, v{vAcc+j}, v{pb+j}")
        A(f"v_and_b32 v{x0}, 15, v{l_}")
        A(f"v_lshlrev_b32 v{x0}, 11, v{x0}")
        A(f"v_lshl_add_u32 v{x1}, v{g_}, 3, v{x0}")
        A(f"v_lshl_add_u32 v{x0}, v{g_}, 4, v{x0}")
        A(f"s_mul_i32 s{sOOFF}, s{sW_}, {48*2048}")
        n = 0
        for t in range(3):
            for sp in range(2):
                tmp = vB0 + 4 * (n % 8); n += 1
                src = vAcc + 16*t + 8*sp
                for j in range(4):
                    A(f"v_cvt_pk_bf16_f32 v{tmp+j}, v{src+2*j}, v{src+2*j+1}")
                A(f"v_permlane32_swap_b32 v{tmp}, v{tmp+2}")
                A(f"v_permlane32_swap_b32 v{tmp+1}, v{tmp+3}")
                A(f"v_permlane16_swap_b32 v{tmp}, v{tmp+2}")
                A(f"v_permlane16_swap_b32 v{tmp+1}, v{tmp+3}")
                A(f"buffer_store_dwordx4 {v(tmp, 4)}, v{x0}, s[{sOUT}:{sOUT+3}], s{sOOFF} offen offset:{sp*64}")
            A(f"s_add_u32 s{sOOFF}, s{sOOFF}, {16*2048}")
        tmp = vB0 + 4 * (n % 8)
        A(f"v_cvt_pk_bf16_f32 v{tmp}, v{vAcc+48}, v{vAcc+49}")
        A(f"v_cvt_pk_bf16_f32 v{tmp+1}, v{vAcc+50}, v{vAcc+51}")
        A(f"s_lshl_b32 s{sOOFF}, s{sW_}, 5\ns_add_u32 s{sOOFF}, s{sOOFF}, {192*2048}")
        A(f"buffer_store_dwordx2 {v(tmp, 2)}, v{x1}, s[{sOUT}:{sOUT+3}], s{sOOFF} offen")
        A.vm = []
        if PROF:
            A.label(f"L_{name}_fin")
            A.barrier_hist()
            A("s_nop 4")
            stamp()
            stamp_flush()
    A.label(f"L_{name}_end")
    A("s_endpgm")


def kd(name, vgpr, accum, sgpr=100):
    return (f".p2align 6\n.amdhsa_kernel {name}\n  .amdhsa_next_free_vgpr {vgpr}\n  .amdhsa_next_free_sgpr {sgpr}\n"
            f"  .amdhsa_accum_offset {accum}\n  .amdhsa_group_segment_fixed_size 0\n  .amdhsa_kernarg_size 104\n"
            f"  .amdhsa_user_sgpr_count 2\n  .amdhsa_user_sgpr_kernarg_segment_ptr 1\n"
            f"  .amdhsa_system_sgpr_workgroup_id_x 1\n.end_amdhsa_kernel\n")
```

```python
from asmlib import *
from k1 import Sched, MF

PART_OFF = 32 << 20
NSLOT = 8
K2_LDS = NSLOT * 8192


def gen_k2(A, name="oproj_kernel"):
    S = Sched(A)
    sW_, sBLK, sKS, sB, sNB, sT0, sT1 = 3, 4, 5, 6, 7, 26, 27
    sOS, sWO, sP = 28, 32, 36
    sWOFF, sOOFF, sDB, sCNT = 48, 49, 52, 50
    vAcc = 0
    vXS = 104
    NX = 6
    PF = 5
    vA0 = 104 + 16 * NX
    vX = vA0 + 6
    vDW = vX + 4
    vL16 = vDW + 1
    NARCH = 216
    NWF = 16
    A.raw(f".globl {name}\n.p2align 8\n.type {name},@function\n{name}:")
    A("s_cmp_ge_u32 s2, 256")
    A(f"s_cbranch_scc1 L_{name}_end")
    A("s_load_dwordx2 s[8:9], s[0:1], 32")
    A("s_load_dwordx2 s[10:11], s[0:1], 72")
    A("s_load_dwordx2 s[24:25], s[0:1], 96")
    A(f"s_and_b32 s{sT0}, s2, 7")
    A(f"s_lshr_b32 s{sBLK}, s{sT0}, 2")
    A(f"s_and_b32 s{sKS}, s{sT0}, 3")
    A(f"s_lshr_b32 s{sT1}, s2, 3")
    A(f"s_lshr_b32 s{sB}, s{sT1}, 2")
    A(f"s_and_b32 s{sNB}, s{sT1}, 3")
    vW, vLn, t0, t1, t2, vq, vg, vr, vc = 10, 11, 12, 13, 14, 15, 16, 17, 18
    A(f"v_lshrrev_b32 v{vW}, 6, v0")
    A(f"v_and_b32 v{vLn}, 63, v0")
    A(f"v_readfirstlane_b32 s{sW_}, v{vW}")
    A(f"v_lshlrev_b32 v{vL16}, 4, v{vLn}")
    A(f"v_lshrrev_b32 v{vg}, 4, v{vLn}")
    A(f"v_bfe_u32 v{vr}, v{vLn}, 2, 2")
    A(f"v_and_b32 v{vc}, 3, v{vLn}")
    A("s_waitcnt lgkmcnt(0)")
    A(f"s_cmp_eq_u32 s{sBLK}, 0")
    A("s_cselect_b64 s[8:9], s[8:9], s[10:11]")
    A(f"s_lshl_b32 s{sT0}, s{sBLK}, 3\ns_add_u32 s{sT0}, s{sT0}, s{sB}\ns_mul_i32 s{sT0}, s{sT0}, {13*131072}")
    A(f"s_lshl_b32 s{sT1}, s{sKS}, 15\ns_add_u32 s{sT0}, s{sT0}, s{sT1}")
    A(f"s_add_u32 s{sOS}, s24, s{sT0}\ns_addc_u32 s{sOS+1}, s25, 0\ns_sub_u32 s{sOS+2}, {13*131072}, s{sT1}\ns_mov_b32 s{sOS+3}, 0x20000")
    A(f"s_lshl_b32 s{sT0}, s{sKS}, 20\ns_lshl_b32 s{sT1}, s{sNB}, 8\ns_add_u32 s{sT0}, s{sT0}, s{sT1}")
    A(f"s_add_u32 s{sWO}, s8, s{sT0}\ns_addc_u32 s{sWO+1}, s9, 0\ns_sub_u32 s{sWO+2}, 0x100000, s{sT1}\ns_mov_b32 s{sWO+3}, 0x20000")
    A(f"s_lshl_b32 s{sT0}, s{sKS}, 1\ns_add_u32 s{sT0}, s{sT0}, s{sBLK}\ns_lshl_b32 s{sT0}, s{sT0}, 3\ns_add_u32 s{sT0}, s{sT0}, s{sB}")
    A(f"s_lshl_b32 s{sT0}, s{sT0}, 2\ns_add_u32 s{sT0}, s{sT0}, s{sNB}\ns_mul_i32 s{sT0}, s{sT0}, {13*8192}\ns_add_u32 s{sT0}, s{sT0}, {PART_OFF}")
    A(f"s_add_u32 s{sP}, s24, s{sT0}\ns_addc_u32 s{sP+1}, s25, 0\ns_mov_b32 s{sP+2}, {13*8192}\ns_mov_b32 s{sP+3}, 0x20000")
    A(f"s_lshl_b32 s{sDB}, s{sW_}, 11")
    A(f"v_add_u32 v{vX+3}, {12*131072}, v{vL16}")
    A(f"v_mul_u32_u24 v{t1}, {3*131072}, v{vW}")
    A(f"v_add_u32 v{vX}, v{vL16}, v{t1}")
    A(f"v_add_u32 v{vX+1}, 131072, v{vX}")
    A(f"v_add_u32 v{vX+2}, 262144, v{vX}")
    A(f"v_lshrrev_b32 v{t0}, 3, v{vLn}")
    A(f"v_lshl_add_u32 v{t0}, v{vW}, 3, v{t0}")
    A(f"v_and_b32 v{t1}, 7, v{vLn}")
    A(f"v_lshlrev_b32 v{t2}, 1, v{vg}")
    A(f"v_xor_b32 v{t2}, v{t2}, v{t1}")
    A(f"v_lshlrev_b32 v{t2}, 4, v{t2}")
    A(f"v_lshl_add_u32 v{vDW}, v{t0}, 10, v{t2}")
    A(f"v_lshrrev_b32 v{t0}, 1, v{vg}")
    A(f"v_lshlrev_b32 v{t0}, 11, v{t0}")
    A(f"v_and_b32 v{t1}, 1, v{vg}")
    A(f"v_lshl_add_u32 v{t0}, v{t1}, 9, v{t0}")
    A(f"v_lshl_add_u32 v{t0}, v{vr}, 7, v{t0}")
    A(f"v_lshl_add_u32 v{t0}, v{vc}, 3, v{t0}")
    A(f"v_lshrrev_b32 v{t2}, 1, v{vr}")
    A(f"v_lshl_or_b32 v{t1}, v{t1}, 1, v{t2}")
    for p in range(4):
        A(f"v_xor_b32 v{t2}, {p}, v{t1}")
        A(f"v_lshl_add_u32 v{vA0+p}, v{t2}, 5, v{t0}")
    A(f"v_lshrrev_b32 v{t2}, 1, v{vW}")
    A(f"v_lshl_add_u32 v{t0}, v{t2}, 10, v{t0}")
    A(f"v_and_b32 v{t2}, 1, v{vW}")
    A(f"v_lshlrev_b32 v{t2}, 1, v{t2}")
    A(f"v_xor_b32 v{t1}, v{t1}, v{t2}")
    A(f"v_lshl_add_u32 v{vA0+4}, v{t1}, 5, v{t0}")
    A(f"v_xor_b32 v{t1}, 1, v{t1}")
    A(f"v_lshl_add_u32 v{vA0+5}, v{t1}, 5, v{t0}")

    def dma_w(k):
        sb = (k % NSLOT) * 8192
        return [f"s_add_u32 m0, s{sDB}, {sb}", f"s_mov_b32 s{sWOFF}, {k*32768}",
                (f"buffer_load_dwordx4 v{vDW}, s[{sWO}:{sWO+3}], s{sWOFF} offen lds", ("w", k)),
                f"s_add_u32 m0, s{sDB}, {sb+896}", f"s_mov_b32 s{sOOFF}, {k*1024}",
                (f"buffer_load_dwordx4 v{vDW}, s[{sWO}:{sWO+3}], s{sWOFF} offen offset:128 lds", ("w", k))]

    def xload(k):
        return [(f"buffer_load_dwordx4 {v(vXS + 16*(k % NX) + 4*t, 4)}, v{vX+t}, s[{sOS}:{sOS+3}], s{sOOFF} offen", ("x", k))
                for t in range(4)]

    for k in range(PF):
        for f in dma_w(k) + xload(k): S.do(f)
    fr = 0

    def wfrag_reads(k, dt, slot):
        base = 4 * slot
        if dt < 8:
            ad, off = vA0 + (dt & 3), (k % NSLOT) * 8192 + (dt >> 2) * 1024
        else:
            ad, off = vA0 + 4 + (dt - 8), (k % NSLOT) * 8192
        return [f"ds_read_b64_tr_b16 {a(base + 2*hh, 2)}, v{ad} offset:{off + hh*4096}" for hh in range(2)]

    for k in range(32):
        A.wait_tag(("w", k), ("x", k))
        A("s_barrier")
        slots = [(fr + j) % NWF for j in range(10)]
        fr += 10
        mf = []
        for dt in range(8):
            for t in range(3):
                d = v(vAcc + 32*t + 4*dt, 4)
                mf.append(f"{MF} {d}, {a(4*slots[dt], 4)}, {v(vXS + 16*(k % NX) + 4*t, 4)}, {d if k else 0}")
        for e in range(2):
            d = v(vAcc + 96 + 4*e, 4)
            mf.append(f"{MF} {d}, {a(4*slots[8+e], 4)}, {v(vXS + 16*(k % NX) + 12, 4)}, {d if k else 0}")
        LA = 4
        for dt in range(LA):
            for t in wfrag_reads(k, dt, slots[dt]):
                A(t)
        q1 = []
        for dt in range(LA, 10):
            for t in wfrag_reads(k, dt, slots[dt]):
                q1.append((2 * (dt - LA), t))
        q2 = []
        if k + PF < 32:
            q2 += [(0, f) for f in dma_w(k + PF) + xload(k + PF)]
        S.run(mf, [q1, q2], [], extra=2)
    A(f"s_mul_i32 s{sT0}, s{sW_}, {3*8192}")
    for t in range(3):
        for dt in range(8):
            off = t * 8192 + dt * 1024
            if off % 4096 == 0 and off:
                A(f"s_add_u32 s{sT0}, s{sT0}, 4096")
            A(f"buffer_store_dwordx4 {v(vAcc + 32*t + 4*dt, 4)}, v{vL16}, s[{sP}:{sP+3}], s{sT0} offen offset:{off % 4096}")
    A(f"s_lshl_b32 s{sT0}, s{sW_}, 11\ns_add_u32 s{sT0}, s{sT0}, {12*8192}")
    for e in range(2):
        A(f"buffer_store_dwordx4 {v(vAcc + 96 + 4*e, 4)}, v{vL16}, s[{sP}:{sP+3}], s{sT0} offen offset:{e*1024}")
    A.vm = []
    A.label(f"L_{name}_end")
    A("s_endpgm")
    return NARCH, NARCH + 4 * NWF


def gen_k3(A, name="red_kernel"):
    A.raw(f".globl {name}\n.p2align 8\n.type {name},@function\n{name}:")
    A("s_cmp_ge_u32 s2, 1664")
    A(f"s_cbranch_scc1 L_{name}_end")
    A("s_load_dwordx2 s[4:5], s[0:1], 80")
    A("s_load_dwordx2 s[6:7], s[0:1], 96")
    A("v_lshrrev_b32 v1, 6, v0")
    A("v_and_b32 v2, 63, v0")
    A("v_readfirstlane_b32 s3, v1")
    A("s_lshl_b32 s16, s2, 2")
    A("s_add_u32 s16, s16, s3")
    A("s_waitcnt lgkmcnt(0)")
    SPL = 64 * 104 * 1024
    A(f"s_add_u32 s8, s6, {PART_OFF}\ns_addc_u32 s9, s7, 0\ns_mov_b32 s10, {4*SPL}\ns_mov_b32 s11, 0x20000")
    A(f"s_mov_b32 s12, s4\ns_mov_b32 s13, s5\ns_mov_b32 s14, {8*208*1024*2}\ns_mov_b32 s15, 0x20000")
    A("s_lshl_b32 s17, s16, 10")
    A("v_lshlrev_b32 v3, 4, v2")
    for j in range(4):
        A(f"buffer_load_dwordx4 v[{8+4*j}:{11+4*j}], v3, s[8:11], s17 offen")
        if j < 3:
            A(f"s_add_u32 s17, s17, {SPL}")
    A(f"s_mul_hi_u32 s18, s16, {(1 << 32) // 104 + 1}")
    A("s_mul_i32 s19, s18, 104")
    A("s_sub_u32 s19, s16, s19")
    A("s_lshr_b32 s20, s19, 3")
    A("s_and_b32 s21, s19, 7")
    A("s_and_b32 s22, s18, 3")
    A("s_bfe_u32 s23, s18, 0x30002")
    A("s_lshr_b32 s24, s18, 5")
    A("s_mul_i32 s25, s23, 208")
    A("s_lshl_b32 s26, s20, 4")
    A("s_add_u32 s25, s25, s26")
    A("s_lshl_b32 s25, s25, 11")
    A("s_lshl_b32 s26, s24, 10\ns_add_u32 s25, s25, s26")
    A("s_lshl_b32 s26, s22, 8\ns_add_u32 s25, s25, s26")
    A("s_lshl_b32 s26, s21, 5\ns_add_u32 s25, s25, s26")
    A("v_and_b32 v4, 15, v2")
    A("v_lshlrev_b32 v4, 11, v4")
    A("v_lshrrev_b32 v5, 4, v2")
    A("v_lshl_add_u32 v4, v5, 3, v4")
    for j in range(4):
        A(f"v_add_f32 v{8+j}, v{8+j}, v{12+j}")
        A(f"v_add_f32 v{16+j}, v{16+j}, v{20+j}")
    for j in range(4):
        A(f"v_add_f32 v{8+j}, v{8+j}, v{16+j}")
    A("v_cvt_pk_bf16_f32 v6, v8, v9")
    A("v_cvt_pk_bf16_f32 v7, v10, v11")
    A("buffer_store_dwordx2 v[6:7], v4, s[12:15], s25 offen")
    A.vm = []
    A.label(f"L_{name}_end")
    A("s_endpgm")
```

```python
import sys
sys.path.insert(0, "gen")
from asmlib import Asm
import k1, k2

NAME = "concat_heads__mha_block_cached__gqa_block_cached__near_ridge"
def build(path):
    ref = open(f"cdna_kernels/{NAME}.s.ref").read().split("\n")
    head = [l for l in ref if l.startswith(";") and "@launch" not in l and "Override launch" not in l and "grid=ceil" not in l]
    A = Asm()
    k1.gen_k1(A, "attn_kernel")
    n1 = dict(A.count); nops1 = A.nops
    fuse = k1.OPT["fuse"]
    if not fuse:
        A.hist = []; A.lgkm = []; A.vm = []
        arch2, tot2 = k2.gen_k2(A, "oproj_kernel")
        A.hist = []; A.lgkm = []; A.vm = []
        k2.gen_k3(A, "red_kernel")
    out = "\n".join(head) + "\n"
    out += f"; @launch kernel=attn_kernel grid=(512,1,1) block=(256,1,1) lds={k1.LDS_BYTES}\n"
    if not fuse:
        out += f"; @launch kernel=oproj_kernel grid=(256,1,1) block=(256,1,1) lds={k2.K2_LDS}\n"
        out += f"; @launch kernel=red_kernel grid=(1664,1,1) block=(256,1,1) lds=0\n"
    out += '.amdgcn_target "amdgcn-amd-amdhsa--gfx950"\n.text\n'
    out += A.text()
    out += '.section .rodata,"a"\n'
    out += k1.kd("attn_kernel", 256, k1.NARCH)
    if not fuse:
        out += k1.kd("oproj_kernel", tot2, arch2)
        out += k1.kd("red_kernel", 24, 24, 32)
    open(path, "w").write(out)
    print("k1 counts", n1, "nops", nops1, "total nops", A.nops, "bytes", len(out))

if __name__ == "__main__":
    if "prof" in sys.argv[2:]:
        k1.PROF = True
    for a_ in sys.argv[2:]:
        if "=" in a_:
            kk, vv = a_.split("=")
            k1.OPT[kk] = int(vv)
    build(sys.argv[1] if len(sys.argv) > 1 else f"cdna_kernels/{NAME}.s")
```
